```python
import torch

def _softmax(x, axis=-1):
    return torch.softmax(x, dim=axis)
def _gelu(x):
    return torch.nn.functional.gelu(x, approximate="tanh")
def _silu(x):
    return torch.nn.functional.silu(x)
def _sigmoid(x):
    return torch.sigmoid(x)
def _layernorm(x, axis=-1, eps=1e-5):
    m = x.mean(dim=axis, keepdim=True)
    v = x.var(dim=axis, keepdim=True, unbiased=False)
    return (x - m) / torch.sqrt(v + eps)
def _scatter_add(tgt, idx, src, axis=0):
    return tgt.clone().index_add_(axis, idx, src)
def _segment_sum(src, seg, n):
    out = torch.zeros((n,) + src.shape[1:], dtype=src.dtype)
    return out.index_add_(0, seg, src)
def _pad(x, pw):
    flat = tuple(v for pair in reversed(pw) for v in pair)
    return torch.nn.functional.pad(x, flat)

kernel_name = 'gather_scatter__molecular_angular_gemnet__graph'

def setup_inputs():

    _w = (lambda a: (lambda t: t.to(torch.bfloat16) if t.is_floating_point() else t)(torch.as_tensor(a)))
    N, deg, De, L = 10000, 32, 4, 3
    E = N * deg
    T = E * deg
    NR = 8
    dist = torch.rand(E).to(float)
    angle = (torch.rand(T) * torch.pi).to(float)
    centers = torch.linspace(0.0, 1.0, NR).to(float)
    ang_freq = torch.arange(1, L + 1).to(float)
    return {
        "m": _w((lambda *s: torch.randn(*s, dtype=torch.bfloat16) * 0.05)(E, De)),
        "idx_in": _w((lambda lo, hi, *s: torch.randint(lo, hi, s))(0, E, T).to(torch.int64)),
        "idx_out": _w((lambda lo, hi, *s: torch.randint(lo, hi, s))(0, E, T).to(torch.int64)),
        "dist": _w(dist),
        "angle": _w(angle),
        "centers": _w(centers),
        "ang_freq": _w(ang_freq),
        "w_rbf": _w((lambda *s: torch.randn(*s, dtype=torch.bfloat16) * 0.2)(NR, De)),
        "w_sbf": _w((lambda *s: torch.randn(*s, dtype=torch.bfloat16) * 0.2)(NR * L, De)),
        "w_down": _w((lambda *s: torch.randn(*s, dtype=torch.bfloat16) * 0.2)(De, De)),
        "w_up": _w((lambda *s: torch.randn(*s, dtype=torch.bfloat16) * 0.2)(De, De)),
    }

def reference(m, idx_in, idx_out, dist, angle, centers, ang_freq, w_rbf, w_sbf, w_down, w_up):
    E, De = m.shape[0], m.shape[1]
    NR = centers.shape[0]
    L = ang_freq.shape[0]
    rbf = torch.exp(-10.0 * (dist[:, None] - centers[None, :]) ** 2)
    cbf = torch.cos(ang_freq[None, :] * angle[:, None])
    rbf_t = rbf[idx_out]
    sbf = torch.reshape(rbf_t[:, :, None] * cbf[:, None, :], (-1, NR * L))
    x = (m[idx_in] @ w_down) * (sbf @ w_sbf)
    agg = _segment_sum(x, idx_out, E)
    return m + (agg @ w_up) * (rbf @ w_rbf)
```

```python
class Asm:
    def __init__(self):
        self.lines = []
        self.uid = 0
    def __call__(self, s=""):
        if s is None: return
        for l in s.split("\n"):
            self.lines.append(l)
    def label(self, name):
        self.lines.append(name + ":")
    def newlabel(self, base):
        self.uid += 1
        return f"L_{base}_{self.uid}"
    def text(self):
        return "\n".join(self.lines) + "\n"

def vr(a, n=1):
    return f"v{a}" if n == 1 else f"v[{a}:{a+n-1}]"
def sr(a, n=1):
    return f"s{a}" if n == 1 else f"s[{a}:{a+n-1}]"

HEADER = """; Kernarg layout for this problem (112 bytes, ptrs only, base s[0:1]):
"""

def kernel_desc(name, vgpr, sgpr):
    acc = (vgpr + 3) // 4 * 4
    return f""".amdhsa_kernel {name}
  .amdhsa_next_free_vgpr {vgpr}
  .amdhsa_next_free_sgpr {sgpr}
  .amdhsa_accum_offset {acc}
  .amdhsa_group_segment_fixed_size 0
  .amdhsa_kernarg_size 112
  .amdhsa_user_sgpr_count 2
  .amdhsa_user_sgpr_kernarg_segment_ptr 1
  .amdhsa_system_sgpr_workgroup_id_x 1
.end_amdhsa_kernel
"""

def srd(a, s, base_lo, base_hi, off, size):
    if off == 0:
        a(f"s_mov_b32 s{s}, s{base_lo}")
        a(f"s_and_b32 s{s+1}, s{base_hi}, 0xffff")
    else:
        a(f"s_add_u32 s{s}, s{base_lo}, {off}")
        a(f"s_addc_u32 s{s+1}, s{base_hi}, 0")
        a(f"s_and_b32 s{s+1}, s{s+1}, 0xffff")
    a(f"s_mov_b32 s{s+2}, {size}")
    a(f"s_mov_b32 s{s+3}, 0x20000")

def wave_scan_add(a, v):
    for sh in (1, 2, 4, 8):
        a(f"s_nop 1")
        a(f"v_add_u32_dpp v{v}, v{v}, v{v} row_shr:{sh} row_mask:0xf bank_mask:0xf bound_ctrl:0")
    a("s_nop 1")
    a(f"v_add_u32_dpp v{v}, v{v}, v{v} row_bcast:15 row_mask:0xa bank_mask:0xf")
    a("s_nop 1")
    a(f"v_add_u32_dpp v{v}, v{v}, v{v} row_bcast:31 row_mask:0xc bank_mask:0xf")
```

```python
import sys
from asmlib import *
E=320000; T=10240000; NB=256; SO=1250; CH=20000; NCH=512
MD_OFF=0; TAB_OFF=0x280000; REC_OFF=0x400000
MAGIC=3435974
K1="gs_bin_kernel"; K2="gather_scatter__molecular_angular_gemnet__graph_kernel"

K1_HISTA=0; K1_HISTB=1024; K1_STAGE=2048; K1_LDS=K1_STAGE+120000+64
def gen_k1(a):
    a(f".globl {K1}\n.p2align 8\n.type {K1},@function\n{K1}:")
    a("s_cmp_ge_u32 s2, 256")
    a(f"s_cbranch_scc1 L_k1_end")
    a("s_load_dwordx4 s[4:7], s[0:1], 0")
    a("s_load_dwordx2 s[8:9], s[0:1], 16")
    a("s_load_dwordx2 s[10:11], s[0:1], 32")
    a("s_load_dwordx2 s[12:13], s[0:1], 72")
    a("s_load_dwordx2 s[14:15], s[0:1], 104")
    a("v_lshrrev_b32 v2, 6, v0")
    a("v_mov_b32 v1, 1")
    a("v_readfirstlane_b32 s90, v2")
    a("s_mov_b32 s80, %d" % MAGIC)
    a("s_mov_b32 s81, %d" % (-SO))
    for i,v in enumerate([16384,32768,49152,65536,81920,98304]): a(f"s_mov_b32 s{82+i}, {v}")
    a("s_mov_b32 s88, 8192"); a("s_mov_b32 s89, 24576")
    a("s_lshl_b32 s91, s2, 1")
    a("s_waitcnt lgkmcnt(0)")
    a("s_load_dwordx8 s[56:63], s[12:13], 0")
    a(f"s_mul_i32 s92, s91, {CH*4}")
    srd(a,16,8,9,"s92",CH*4)
    srd(a,20,6,7,"s92",CH*4)
    a(f"s_add_u32 s92, s92, {CH*4}")
    srd(a,28,8,9,"s92",CH*4)
    srd(a,32,6,7,"s92",CH*4)
    a(f"s_mul_i32 s92, s91, {CH*2}")
    srd(a,24,10,11,"s92",CH*2)
    a(f"s_add_u32 s92, s92, {CH*2}")
    srd(a,36,10,11,"s92",CH*2)
    srd(a,44,14,15,TAB_OFF,NB*NCH*4)
    srd(a,48,4,5,0,E*8)
    srd(a,52,14,15,MD_OFF,E*8) if MD_OFF else srd(a,52,14,15,0,E*8)
    a(f"s_mul_i32 s92, s2, {SO*8}")
    a("v_lshl_add_u32 v2, v0, 3, s92")
    a("v_add_u32 v3, 8192, v2")
    a("buffer_load_dwordx2 v[108:109], v2, s[48:51], 0 offen")
    a("buffer_load_dwordx2 v[110:111], v3, s[48:51], 0 offen")
    a("v_lshlrev_b32 v4, 4, v0")
    a("v_lshlrev_b32 v5, 3, v0")
    a("v_add_u32 v6, 65536, v4")
    a("v_add_u32 v7, 32768, v5")
    so16=["0","s82","s83","s84"]; so8=["0","s88","s82","s89"]
    def loads(OUT,IN,TH,so,si,sa):
        for j in range(5):
            if j<4:
                a(f"buffer_load_dwordx4 {vr(OUT+4*j,4)}, v4, {sr(so,4)}, {so16[j]} offen nt")
                a(f"buffer_load_dwordx4 {vr(IN+4*j,4)}, v4, {sr(si,4)}, {so16[j]} offen nt")
                a(f"buffer_load_dwordx2 {vr(TH+2*j,2)}, v5, {sr(sa,4)}, {so8[j]} offen nt")
            else:
                a(f"buffer_load_dwordx4 {vr(OUT+4*j,4)}, v6, {sr(so,4)}, 0 offen nt")
                a(f"buffer_load_dwordx4 {vr(IN+4*j,4)}, v6, {sr(si,4)}, 0 offen nt")
                a(f"buffer_load_dwordx2 {vr(TH+2*j,2)}, v7, {sr(sa,4)}, 0 offen nt")
    A=(8,28,48); B=(58,78,98); R=108
    loads(*A,16,20,24)
    loads(*B,28,32,36)
    a("v_mov_b32 v6, 0")
    a("v_lshlrev_b32 v7, 2, v0")
    a("v_cmp_gt_u32 vcc, 512, v0")
    a("s_and_saveexec_b64 s[96:97], vcc")
    a("ds_write_b32 v7, v6")
    a("s_mov_b64 exec, s[96:97]")
    a("s_waitcnt lgkmcnt(0)")
    for k in range(4):
        for d in range(4):
            src=56+k*2+d//2
            if d%2==0: a(f"s_lshl_b32 s{64+k*4+d}, s{src}, 16")
            else: a(f"s_and_b32 s{64+k*4+d}, s{src}, 0xffff0000")
    a("s_waitcnt vmcnt(30)")
    for e in range(2):
        m0=108+2*e
        a(f"v_lshlrev_b32 v112, 16, v{m0}")
        a(f"v_and_b32 v113, 0xffff0000, v{m0}")
        a(f"v_lshlrev_b32 v114, 16, v{m0+1}")
        a(f"v_and_b32 v115, 0xffff0000, v{m0+1}")
        for d in range(4):
            a(f"v_mul_f32 v{116+d}, s{64+d}, v112")
            for k in range(1,4): a(f"v_fmac_f32 v{116+d}, s{64+4*k+d}, v{112+k}")
        a(f"v_cvt_pk_bf16_f32 v{120+2*e}, v116, v117")
        a(f"v_cvt_pk_bf16_f32 v{121+2*e}, v118, v119")
    a("buffer_store_dwordx2 v[120:121], v2, s[52:55], 0 offen")
    a(f"v_cmp_gt_u32 vcc, {SO-1024}, v0")
    a("s_and_saveexec_b64 s[96:97], vcc")
    a("buffer_store_dwordx2 v[122:123], v3, s[52:55], 0 offen")
    a("s_mov_b64 exec, s[96:97]")
    a("s_waitcnt lgkmcnt(0)")
    a("s_barrier")
    def process(OUT,IN,TH,HIST,younger,first):
        for k in range(20):
            j=k//4
            if k%4==0:
                a(f"s_waitcnt vmcnt({1+3*(4-j)+younger})")
                if j==4:
                    a(f"v_cmp_gt_u32 vcc, {CH//4-4096}, v0")
                    a("s_and_saveexec_b64 s[96:97], vcc")
            a(f"v_mul_hi_u32_u24 v2, s80, v{OUT+k}")
            a(f"v_mad_i32_i24 v3, v2, s81, v{OUT+k}")
            a(f"v_lshl_or_b32 v{IN+k}, v{IN+k}, 11, v3")
            a(f"v_lshlrev_b32 v{OUT+k}, 2, v2")
            if k%4==0 and k>=12: a("s_waitcnt lgkmcnt(11)")
            a(f"ds_add_rtn_u32 v{R+k}, v{OUT+k}, v1 offset:{HIST}")
        a("s_mov_b64 exec, s[96:97]")
        a(f"s_waitcnt vmcnt({younger}) lgkmcnt(0)")
        a("s_barrier")
        Ls=a.newlabel("scan_skip")
        a("s_cmp_lg_u32 s90, 0")
        a(f"s_cbranch_scc1 {Ls}")
        a("v_lshlrev_b32 v6, 4, v0")
        a(f"ds_read_b128 v[2:5], v6 offset:{HIST}")
        a("s_waitcnt lgkmcnt(0)")
        a("v_add_u32 v7, v2, v3")
        a("v_add_u32 v7, v7, v4")
        a("v_add_u32 v7, v7, v5")
        wave_scan_add(a,7)
        a("v_lshlrev_b32 v6, 13, v0")
        a("s_lshl_b32 s92, s91, 2")
        a("v_sub_u32 v7, v7, v5")
        a("v_lshl_or_b32 v5, v5, 16, v7")
        a("v_add_u32 v6, 4096, v6")
        a("buffer_store_dword v5, v6, s[44:47], s92 offen offset:2048")
        a("v_mov_b32 v5, v7") if False else None
        a("s_nop 0")
        a("v_mov_b32 v5, v7")
        a("v_sub_u32 v7, v7, v4")
        a("v_lshl_or_b32 v4, v4, 16, v7")
        a("buffer_store_dword v4, v6, s[44:47], s92 offen")
        a("v_subrev_u32 v6, 4096, v6")
        a("v_mov_b32 v4, v7")
        a("v_sub_u32 v7, v7, v3")
        a("v_lshl_or_b32 v3, v3, 16, v7")
        a("buffer_store_dword v3, v6, s[44:47], s92 offen offset:2048")
        a("s_nop 0")
        a("v_mov_b32 v3, v7")
        a("v_sub_u32 v7, v7, v2")
        a("v_lshl_or_b32 v2, v2, 16, v7")
        a("buffer_store_dword v2, v6, s[44:47], s92 offen")
        a("s_nop 0")
        a("v_mov_b32 v2, v7")
        a("v_lshlrev_b32 v6, 4, v0")
        a(f"ds_write_b128 v6, v[2:5] offset:{HIST}")
        a("s_waitcnt lgkmcnt(0)")
        a.label(Ls)
        a("s_barrier")
        def mask_on():
            a(f"v_cmp_gt_u32 vcc, {CH//4-4096}, v0")
            a("s_and_saveexec_b64 s[96:97], vcc")
        def mask_off(): a("s_mov_b64 exec, s[96:97]")
        def reads(j):
            if j==4: mask_on()
            for k in range(4*j,4*j+4): a(f"ds_read_b32 v{OUT+k}, v{OUT+k} offset:{HIST}")
            if j==4: mask_off()
        reads(0); reads(1)
        for j in range(5):
            a("s_waitcnt lgkmcnt(4)" if j<4 else "s_waitcnt lgkmcnt(0)")
            if j==4: mask_on()
            for k in range(4*j,4*j+4):
                a(f"v_add_u32 v{OUT+k}, v{OUT+k}, v{R+k}")
                a(f"v_lshlrev_b32 v2, 1, v{OUT+k}")
                a("v_and_b32 v2, -16, v2")
                a(f"v_lshl_add_u32 v3, v{OUT+k}, 2, v2")
                a(f"v_add_lshl_u32 v2, v{OUT+k}, v2, 1")
                a(f"ds_write_b32 v3, v{IN+k} offset:{K1_STAGE}")
                th=TH+2*(k//4)+(k%4)//2
                if k%2==0: a(f"ds_write_b16 v2, v{th} offset:{K1_STAGE+32}")
                else: a(f"ds_write_b16_d16_hi v2, v{th} offset:{K1_STAGE+32}")
            if j==4: mask_off()
            if j+2<=4:
                a("s_waitcnt lgkmcnt(8)")
                reads(j+2)
        a("s_waitcnt lgkmcnt(0)")
        a("s_barrier")
        a(f"s_mul_i32 s92, s91, {CH*6}")
        a(f"s_add_u32 s92, s92, {REC_OFF}")
        srd(a,40,14,15,"s92",CH*6)
        a("v_add_u32 v6, 65536, v4") if False else None
        a("v_lshlrev_b32 v6, 4, v0")
        a("v_add_u32 v7, 65536, v6")
        dst=[R+4*i for i in range(5)]+[OUT+4*i for i in range(3)]
        for i in range(8):
            if i<4: a(f"ds_read_b128 {vr(dst[i],4)}, v6 offset:{K1_STAGE+i*16384}")
            else:   a(f"ds_read_b128 {vr(dst[i],4)}, v7 offset:{K1_STAGE+(i-4)*16384}")
        a("v_add_u32 v7, 114688, v6")
        so=["0","s82","s83","s84","s85","s86","s87"]
        for i in range(8):
            a(f"s_waitcnt lgkmcnt({7-i})")
            if i<7: a(f"buffer_store_dwordx4 {vr(dst[i],4)}, v6, s[40:43], {so[i]} offen")
            else:   a(f"buffer_store_dwordx4 {vr(dst[i],4)}, v7, s[40:43], 0 offen")
    process(*A,K1_HISTA,15+1,True)
    a("s_add_u32 s91, s91, 1")
    process(*B,K1_HISTB,1+8,False)
    a.label("L_k1_end")
    a("s_endpgm")

GCAP=4096
K2_ACC=0
K2_WTOT=40000
K2_AHI=40064
K2_ALO=50064
K2_DESC=70064
K2_LDS=K2_DESC+(GCAP+256)*4
def gen_k2(a):
    a(f".globl {K2}\n.p2align 8\n.type {K2},@function\n{K2}:")
    a("s_cmp_ge_u32 s2, 256")
    a("s_cbranch_scc1 L_k2_end")
    a("s_load_dwordx2 s[4:5], s[0:1], 0")
    a("s_load_dwordx2 s[6:7], s[0:1], 24")
    a("s_load_dwordx2 s[8:9], s[0:1], 40")
    a("s_load_dwordx4 s[12:15], s[0:1], 56")
    a("s_load_dwordx4 s[16:19], s[0:1], 80")
    a("s_load_dwordx2 s[10:11], s[0:1], 104")
    a("v_lshrrev_b32 v2, 6, v0")
    a("s_nop 0")
    a("v_readfirstlane_b32 s3, v2")
    a("s_waitcnt lgkmcnt(0)")
    a("s_lshl_b32 s96, s2, 11")
    a(f"s_add_u32 s96, s96, {TAB_OFF}")
    srd(a,20,10,11,"s96",NCH*4)
    srd(a,24,10,11,REC_OFF,T*6)
    srd(a,28,10,11,0,E*8)
    srd(a,32,6,7,0,E*2)
    a("v_lshlrev_b32 v2, 2, v0")
    a("buffer_load_dword v10, v2, s[20:23], 0 offen")
    a(f"s_mul_i32 s97, s2, {SO}")
    a("v_add_u32 v3, s97, v0")
    a("v_lshlrev_b32 v3, 1, v3")
    a("v_add_u32 v4, 2048, v3")
    a("v_mov_b32 v11, 0"); a("v_mov_b32 v12, 0")
    a("buffer_load_short_d16_hi v11, v3, s[32:35], 0 offen")
    a("buffer_load_short_d16_hi v12, v4, s[32:35], 0 offen")
    a("s_load_dwordx4 s[36:39], s[8:9], 0")
    a("s_load_dwordx16 s[40:55], s[14:15], 0")
    a("s_load_dwordx16 s[56:71], s[14:15], 64")
    a("s_load_dwordx16 s[72:87], s[14:15], 128")
    a("v_mov_b32 v20, 0"); a("v_mov_b32 v21, 0"); a("v_mov_b32 v22, 0"); a("v_mov_b32 v23, 0")
    a("v_lshlrev_b32 v5, 4, v0")
    a(f"ds_write_b128 v5, v[20:23] offset:0")
    a(f"ds_write_b128 v5, v[20:23] offset:16384")
    a(f"v_cmp_gt_u32 vcc, {2500-2048}, v0")
    a("s_and_saveexec_b64 s[98:99], vcc")
    a(f"ds_write_b128 v5, v[20:23] offset:32768")
    a("s_mov_b64 exec, s[98:99]")
    a("s_waitcnt vmcnt(0) lgkmcnt(0)")
    a("s_mov_b32 s88, 0xc1200000")
    a("s_mov_b32 s89, 0x3fb8aa3b")
    a("s_mov_b32 s90, 0xffff0000")
    def rnd2(x,y):
        a(f"v_cvt_pk_bf16_f32 v13, v{x}, v{y}")
        a(f"v_lshlrev_b32 v{x}, 16, v13")
        a(f"v_and_b32 v{y}, s90, v13")
    for r in range(8):
        src=36+r//2
        if r%2==0: a(f"s_lshl_b32 s91, s{src}, 16")
        else: a(f"s_and_b32 s91, s{src}, s90")
        x=24+r; y=32+r
        a(f"v_subrev_f32 v{x}, s91, v11")
        a(f"v_subrev_f32 v{y}, s91, v12")
        rnd2(x,y)
        a(f"v_mul_f32 v{x}, v{x}, v{x}")
        a(f"v_mul_f32 v{y}, v{y}, v{y}")
        rnd2(x,y)
        a(f"v_mul_f32 v{x}, s88, v{x}")
        a(f"v_mul_f32 v{y}, s88, v{y}")
        rnd2(x,y)
        a(f"v_mul_f32 v{x}, s89, v{x}")
        a(f"v_mul_f32 v{y}, s89, v{y}")
        a(f"v_exp_f32 v{x}, v{x}")
        a(f"v_exp_f32 v{y}, v{y}")
        a("s_nop 0")
        rnd2(x,y)
    for r in range(8):
        for l in range(3):
            for d in range(4):
                src=40+(r*3+l)*2+d//2
                if d%2==0: a(f"s_lshl_b32 s91, s{src}, 16")
                else: a(f"s_and_b32 s91, s{src}, s90")
                if r==0:
                    a(f"v_mul_f32 v{40+l*4+d}, s91, v24")
                    a(f"v_mul_f32 v{52+l*4+d}, s91, v32")
                else:
                    a(f"v_fmac_f32 v{40+l*4+d}, s91, v{24+r}")
                    a(f"v_fmac_f32 v{52+l*4+d}, s91, v{32+r}")
    a("s_load_dwordx16 s[40:55], s[12:13], 0")
    a("s_load_dwordx8 s[56:63], s[16:17], 0")
    for e in range(2):
        base=40+12*e
        for i in range(6):
            a(f"v_cvt_pk_bf16_f32 v{64+i}, v{base+2*i}, v{base+2*i+1}")
        if e==0:
            a("v_lshlrev_b32 v5, 4, v0"); a("v_lshlrev_b32 v6, 3, v0")
            a(f"ds_write_b128 v5, v[64:67] offset:{K2_ALO}")
            a(f"ds_write_b64 v6, v[68:69] offset:{K2_AHI}")
        else:
            a(f"v_cmp_gt_u32 vcc, {SO-1024}, v0")
            a("s_and_saveexec_b64 s[98:99], vcc")
            a("v_add_u32 v7, 16384, v5")
            a(f"ds_write_b128 v7, v[64:67] offset:{K2_ALO}")
            a(f"ds_write_b64 v6, v[68:69] offset:{K2_AHI+8192}")
            a("s_mov_b64 exec, s[98:99]")
        a("s_nop 1")
    a("s_waitcnt lgkmcnt(0)")
    for r in range(8):
        for d in range(4):
            src=40+r*2+d//2
            if d%2==0: a(f"s_lshl_b32 s91, s{src}, 16")
            else: a(f"s_and_b32 s91, s{src}, s90")
            if r==0:
                a(f"v_mul_f32 v{40+d}, s91, v24"); a(f"v_mul_f32 v{44+d}, s91, v32")
            else:
                a(f"v_fmac_f32 v{40+d}, s91, v{24+r}"); a(f"v_fmac_f32 v{44+d}, s91, v{32+r}")
    for d in range(4): rnd2(40+d,44+d)
    a("v_lshrrev_b32 v14, 16, v10")
    a("v_and_b32 v15, 0xffff, v10")
    a("v_add_u32 v16, 15, v14")
    a("v_lshrrev_b32 v16, 4, v16")
    a("v_mov_b32 v17, v16")
    wave_scan_add(a,17)
    a("v_and_b32 v5, 63, v0")
    a("v_cmp_eq_u32 vcc, 63, v5")
    a("s_and_saveexec_b64 s[98:99], vcc")
    a("s_lshl_b32 s91, s3, 2")
    a(f"v_mov_b32 v5, s91")
    a(f"ds_write_b32 v5, v17 offset:{K2_WTOT}")
    a("s_mov_b64 exec, s[98:99]")
    a("s_waitcnt lgkmcnt(0)")
    a("s_barrier")
    a("v_mov_b32 v5, 0")
    a(f"ds_read_b128 v[24:27], v5 offset:{K2_WTOT}")
    a(f"ds_read_b128 v[28:31], v5 offset:{K2_WTOT+16}")
    a("s_waitcnt lgkmcnt(0)")
    a("v_sub_u32 v17, v17, v16")
    a("s_mov_b32 s92, 0")
    for i in range(8):
        a(f"v_readfirstlane_b32 s91, v{24+i}")
        a("s_nop 0")
        a(f"s_cmp_gt_u32 s3, {i}")
        a("s_cselect_b32 s93, s91, 0")
        a("v_add_u32 v17, s93, v17")
        a("s_add_u32 s92, s92, s91")
    a(f"v_mul_u32_u24 v18, {CH}, v0")
    a("v_add_u32 v18, v18, v15")
    a("s_mov_b32 s94, 0")
    a.label("L_k2_batch")
    a("s_cmp_ge_u32 s94, s92")
    a("s_cbranch_scc1 L_k2_done")
    a("v_mov_b32 v20, 0"); a("v_mov_b32 v21, 0"); a("v_mov_b32 v22, 0"); a("v_mov_b32 v23, 0")
    a("v_lshlrev_b32 v5, 4, v0")
    a(f"v_add_u32 v5, {K2_DESC}, v5")
    a("s_barrier")
    a(f"ds_write_b128 v5, v[20:23]")
    a(f"v_cmp_gt_u32 vcc, 64, v0")
    a("s_and_saveexec_b64 s[98:99], vcc")
    a(f"ds_write_b128 v5, v[20:23] offset:16384")
    a("s_mov_b64 exec, s[98:99]")
    a("s_waitcnt lgkmcnt(0)")
    a("s_barrier")
    a("v_sub_u32 v19, s94, v17")
    a("v_max_i32 v19, 0, v19")
    a(f"s_add_u32 s95, s94, {GCAP}")
    a("s_mov_b64 s[98:99], exec")
    a.label("L_k2_build")
    a("v_add_u32 v5, v17, v19")
    a("v_cmp_lt_u32 vcc, v19, v16")
    a("v_cmp_gt_u32 s[90:91], s95, v5")
    a("s_and_b64 vcc, vcc, s[90:91]")
    a("s_and_b64 exec, exec, vcc")
    a("s_cbranch_execz L_k2_build_done")
    a("v_lshlrev_b32 v6, 4, v19")
    a("v_sub_u32 v7, v14, v6")
    a("v_min_u32 v7, 16, v7")
    a("v_add_u32 v6, v6, v18")
    a("v_lshl_or_b32 v6, v6, 5, v7")
    a("v_subrev_u32 v5, s94, v5")
    a("v_lshlrev_b32 v5, 2, v5")
    a(f"v_add_u32 v5, {K2_DESC}, v5")
    a(f"ds_write_b32 v5, v6")
    a("v_add_u32 v19, 1, v19")
    a("s_branch L_k2_build")
    a.label("L_k2_build_done")
    a("s_mov_b64 exec, s[98:99]")
    a("s_mov_b32 s90, 0xffff0000")
    a("s_waitcnt lgkmcnt(0)")
    a("s_barrier")
    a("s_sub_u32 s95, s92, s94")
    a(f"s_min_u32 s95, s95, {GCAP}")
    a("s_add_u32 s95, s95, 63")
    a("s_lshr_b32 s95, s95, 6")
    a("v_and_b32 v5, 63, v0")
    a("v_lshrrev_b32 v6, 4, v5")
    a("s_lshl_b32 s91, s3, 2")
    a("v_add_u32 v6, s91, v6")
    a("v_lshlrev_b32 v70, 2, v6")
    a(f"v_add_u32 v70, {K2_DESC}, v70")
    a("v_and_b32 v71, 15, v5")
    for s in range(3): a(f"v_mov_b32 v{75+s}, 0")
    a("v_mov_b32 v69, 0x7ffffff0")
    def S1(s):
        a(f"ds_read_b32 v84, v70")
        a("v_add_u32 v70, 256, v70")
        a("s_waitcnt lgkmcnt(0)")
        a("v_and_b32 v85, 31, v84")
        a("v_lshrrev_b32 v84, 5, v84")
        a(f"v_cmp_lt_u32 {sr(36+2*s,2)}, v71, v85")
        a("v_add_u32 v84, v84, v71")
        a("v_lshlrev_b32 v85, 1, v84")
        a("v_and_b32 v85, -16, v85")
        a("v_lshl_add_u32 v86, v84, 2, v85")
        a("v_add_lshl_u32 v85, v84, v85, 1")
        a(f"v_cndmask_b32 v86, v69, v86, {sr(36+2*s,2)}")
        a(f"v_cndmask_b32 v85, v69, v85, {sr(36+2*s,2)}")
        a(f"buffer_load_dword v{72+s}, v86, s[24:27], 0 offen")
        a(f"buffer_load_short_d16_hi v{75+s}, v85, s[24:27], 0 offen offset:32")
    def S2(s,wait):
        a(f"s_waitcnt vmcnt({wait})")
        a(f"v_lshrrev_b32 v87, 11, v{72+s}")
        a(f"v_lshlrev_b32 v87, 3, v87")
        a(f"buffer_load_dwordx2 {vr(78+2*s,2)}, v87, s[28:31], 0 offen")
    def S3(s,wait):
        a(f"v_and_b32 v88, 0x7ff, v{72+s}")
        a(f"v_lshlrev_b32 v89, 4, v88")
        a(f"v_lshlrev_b32 v88, 3, v88")
        a(f"ds_read_b128 v[92:95], v89 offset:{K2_ALO}")
        a(f"ds_read_b64 v[96:97], v88 offset:{K2_AHI}")
        a(f"v_mul_f32 v90, 0.15915494, v{75+s}")
        a("v_fract_f32 v90, v90")
        a("v_cos_f32 v90, v90")
        a("s_nop 0")
        a("v_add_f32 v91, v90, v90")
        a("v_fma_f32 v91, v91, v90, -1.0")
        a("v_add_f32 v98, v91, v91")
        a("v_fma_f32 v98, v98, v90, -v90")
        a("s_waitcnt lgkmcnt(0)")
        cs=[90,91,98]; src=[92,93,94,95,96,97]
        for l in range(3):
            for d in range(4):
                r=src[l*2+d//2]
                if d%2==0: a(f"v_lshlrev_b32 v99, 16, v{r}")
                else: a(f"v_and_b32 v99, s90, v{r}")
                if l==0: a(f"v_mul_f32 v{100+d}, v99, v{cs[l]}")
                else: a(f"v_fmac_f32 v{100+d}, v99, v{cs[l]}")
        a(f"s_waitcnt vmcnt({wait})")
        a(f"s_mov_b64 exec, {sr(36+2*s,2)}")
        for d in range(4):
            r=78+2*s+d//2
            if d%2==0: a(f"v_lshlrev_b32 v99, 16, v{r}")
            else: a(f"v_and_b32 v99, s90, v{r}")
            a(f"v_mul_f32 v99, v99, v{100+d}")
            a(f"v_cvt_f64_f32 v[{104+2*d}:{105+2*d}], v99")
            a(f"ds_add_f64 v88, v[{104+2*d}:{105+2*d}] offset:{K2_ACC+d*10000}")
        a("s_mov_b64 exec, -1")
    S1(0); S1(1); S2(0,2)
    a("s_mov_b32 s96, 0")
    a.label("L_k2_loop")
    for u in range(3):
        S1((u+2)%3)
        S2((u+1)%3, 1+2)
        S3(u, 2+1)
        a("s_add_u32 s96, s96, 1")
        a("s_cmp_ge_u32 s96, s95")
        if u<2: a("s_cbranch_scc1 L_k2_loop_done")
        else:   a("s_cbranch_scc0 L_k2_loop")
    a.label("L_k2_loop_done")
    a("s_mov_b64 exec, -1")
    a("s_waitcnt vmcnt(0) lgkmcnt(0)")
    a(f"s_add_u32 s94, s94, {GCAP}")
    a("s_branch L_k2_batch")
    a.label("L_k2_done")
    a("s_waitcnt lgkmcnt(0)")
    a("s_barrier")
    srd(a,20,4,5,0,E*8)
    srd(a,24,18,19,0,E*8)
    a("v_add_u32 v3, s97, v0")
    a("v_lshlrev_b32 v3, 3, v3")
    a("v_add_u32 v4, 8192, v3")
    a("buffer_load_dwordx2 v[24:25], v3, s[20:23], 0 offen")
    a("buffer_load_dwordx2 v[26:27], v4, s[20:23], 0 offen")
    for k in range(4):
        for d in range(4):
            src=56+k*2+d//2
            if d%2==0: a(f"s_lshl_b32 s{64+k*4+d}, s{src}, 16")
            else: a(f"s_and_b32 s{64+k*4+d}, s{src}, s90")
    a("v_lshlrev_b32 v5, 3, v0")
    for e in range(2):
        for d in range(4):
            a(f"ds_read_b64 v[{50+2*d}:{51+2*d}], v5 offset:{K2_ACC+d*10000+e*8192}")
        a("s_waitcnt lgkmcnt(0)")
        for d in range(4):
            a(f"v_cvt_f32_f64 v{60+d}, v[{50+2*d}:{51+2*d}]")
        a("v_cvt_pk_bf16_f32 v13, v60, v61"); a("v_lshlrev_b32 v60, 16, v13"); a("v_and_b32 v61, s90, v13")
        a("v_cvt_pk_bf16_f32 v13, v62, v63"); a("v_lshlrev_b32 v62, 16, v13"); a("v_and_b32 v63, s90, v13")
        for d in range(4):
            a(f"v_mul_f32 v{64+d}, s{64+d}, v60")
            for k in range(1,4): a(f"v_fmac_f32 v{64+d}, s{64+4*k+d}, v{60+k}")
        def r2(x,y):
            a(f"v_cvt_pk_bf16_f32 v13, v{x}, v{y}"); a(f"v_lshlrev_b32 v{x}, 16, v13"); a(f"v_and_b32 v{y}, s90, v13")
        r2(64,65); r2(66,67)
        for d in range(4): a(f"v_mul_f32 v{64+d}, v{64+d}, v{40+4*e+d}")
        r2(64,65); r2(66,67)
        if e==0: a("s_waitcnt vmcnt(0)")
        mm=24+2*e
        a(f"v_lshlrev_b32 v60, 16, v{mm}"); a(f"v_and_b32 v61, s90, v{mm}")
        a(f"v_lshlrev_b32 v62, 16, v{mm+1}"); a(f"v_and_b32 v63, s90, v{mm+1}")
        for d in range(4): a(f"v_add_f32 v{64+d}, v{64+d}, v{60+d}")
        a(f"v_cvt_pk_bf16_f32 v{28+2*e}, v64, v65")
        a(f"v_cvt_pk_bf16_f32 v{29+2*e}, v66, v67")
    a("buffer_store_dwordx2 v[28:29], v3, s[24:27], 0 offen")
    a(f"v_cmp_gt_u32 vcc, {SO-1024}, v0")
    a("s_and_saveexec_b64 s[98:99], vcc")
    a("buffer_store_dwordx2 v[30:31], v4, s[24:27], 0 offen")
    a.label("L_k2_end")
    a("s_endpgm")

def main(out):
    a=Asm()
    a(HEADER.rstrip())
    a(f"; @launch kernel={K1} grid=(256,1,1) block=(1024,1,1) lds={K1_LDS}")
    a(f"; @launch kernel={K2} grid=(256,1,1) block=(1024,1,1) lds={K2_LDS}")
    a('.amdgcn_target "amdgcn-amd-amdhsa--gfx950"')
    a(".text")
    gen_k1(a)
    gen_k2(a)
    a('.section .rodata,"a"')
    a(".p2align 6")
    a(kernel_desc(K1,128,100))
    a(".p2align 6")
    a(kernel_desc(K2,112,100))
    lines=[l for l in a.lines if l is not None]
    open(out,"w").write("\n".join(lines)+"\n")
if __name__=="__main__":
    main(sys.argv[1] if len(sys.argv)>1 else "gather_scatter__molecular_angular_gemnet__graph.s")
```

```python
import sys,os
STAMP=int(os.environ.get('STAMP','0'))
STAMP_OFF=0x8000000
STPOL=os.environ.get('STPOL','')
from asmlib import *
E=320000; T=10240000; NB=256; SO=1250; CH=20000; NCH=512
MD_OFF=0; TAB_OFF=0x280000; REC_OFF=0x400000
MAGIC=3435974
K1="gs_bin_kernel"; K2="gather_scatter__molecular_angular_gemnet__graph_kernel"

K1_HISTA=0; K1_HISTB=1024; K1_MMAX=2048; K1_STAGE=2112; K1_LDS=K1_STAGE+120000+64
MMAX_OFF=0x380000
stampn=[0]
def stamp(a,base=56):
    if STAMP:
        i=stampn[0]; stampn[0]+=1
        a(f"s_memrealtime s[{base+2*i}:{base+2*i+1}]")
def stamp_flush(a,wslo,wshi,kid,wavereg,base=64,srdreg=40):
    if STAMP:
        n=stampn[0]; stampn[0]=0
        L=a.newlabel("stamp_skip")
        a("s_waitcnt lgkmcnt(0)")
        a(f"s_cmp_lg_u32 {wavereg}, 0")
        a(f"s_cbranch_scc1 {L}")
        a(f"s_lshl_b32 s92, s2, 7")
        a(f"s_add_u32 s92, s92, {STAMP_OFF+kid*0x40000}")
        srd(a,srdreg,wslo,wshi,"s92",128)
        a("s_mov_b64 exec, 1")
        a("v_mov_b32 v3, 0")
        a(f"v_mov_b32 v2, s98")
        a(f"buffer_store_dword v2, v3, s[{srdreg}:{srdreg+3}], 0 offen")
        for i in range(n):
            a(f"v_mov_b32 v2, s{base+2*i}")
            a(f"buffer_store_dword v2, v3, s[{srdreg}:{srdreg+3}], 0 offen offset:{4*i+4}")
        a.label(L)
def gen_k1(a):
    QW=1000
    a(f".globl {K1}\n.p2align 8\n.type {K1},@function\n{K1}:")
    a("s_cmp_ge_u32 s2, 256")
    a(f"s_cbranch_scc1 L_k1_end")
    if STAMP: a("s_memrealtime s[98:99]")
    a("s_load_dwordx4 s[4:7], s[0:1], 0")
    a("s_load_dwordx2 s[8:9], s[0:1], 16")
    a("s_load_dwordx2 s[10:11], s[0:1], 32")
    a("s_load_dwordx2 s[12:13], s[0:1], 72")
    a("s_load_dwordx2 s[14:15], s[0:1], 104")
    a("v_lshrrev_b32 v2, 6, v0")
    a("v_mov_b32 v1, 1")
    a("v_readfirstlane_b32 s90, v2")
    a("v_mov_b32 v112, 0")
    a("v_lshlrev_b32 v113, 2, v0")
    a("v_cmp_gt_u32 vcc, 516, v0")
    a("s_and_saveexec_b64 s[96:97], vcc")
    a("ds_write_b32 v113, v112")
    a("s_mov_b64 exec, s[96:97]")
    a("s_mov_b32 s80, %d" % MAGIC)
    a("s_mov_b32 s81, %d" % (-SO))
    for i,v in enumerate([16384,32768,49152,65536,81920,98304]): a(f"s_mov_b32 s{82+i}, {v}")
    a("s_lshl_b32 s91, s2, 1")
    for j in range(10):
        a(f"s_add_u32 s92, s2, {j*256}")
        a(f"s_mul_i32 s{16+j}, s92, {QW*16}")
        a(f"s_lshr_b32 s{26+j}, s{16+j}, 1")
    a("v_lshlrev_b32 v4, 4, v0")
    a("v_lshlrev_b32 v5, 3, v0")
    a("v_add_u32 v6, 65536, v4")
    a(f"v_cmp_gt_u32 vcc, {QW}, v0")
    a("s_mov_b64 s[94:95], vcc")
    a("s_waitcnt lgkmcnt(0)")
    a("s_barrier")
    a("s_load_dwordx8 s[56:63], s[12:13], 0")
    srd(a,36,8,9,0,T*4)
    srd(a,40,6,7,0,T*4)
    srd(a,44,10,11,0,T*2)
    srd(a,48,4,5,0,E*8)
    srd(a,52,14,15,0,E*8)
    srd(a,72,14,15,TAB_OFF,NB*NCH*4)
    a(f"s_mul_i32 s92, s2, {SO*8}")
    a("v_lshl_add_u32 v2, v0, 3, s92")
    a("v_add_u32 v3, 8192, v2")
    a("buffer_load_dwordx2 v[108:109], v2, s[48:51], 0 offen")
    a("buffer_load_dwordx2 v[110:111], v3, s[48:51], 0 offen")
    A=(8,28,48); B=(58,78,98); R=108
    def quad_loads(S,j,step):
        OUT,IN,TH=S
        return [f"buffer_load_dwordx4 {vr(OUT+4*j,4)}, v4, s[36:39], s{16+step} offen nt",
                f"buffer_load_dwordx4 {vr(IN+4*j,4)}, v4, s[40:43], s{16+step} offen nt",
                f"buffer_load_dwordx2 {vr(TH+2*j,2)}, v5, s[44:47], s{26+step} offen nt"]
    def on(): a("s_mov_b64 exec, s[94:95]")
    def off(): a("s_mov_b64 exec, -1")
    on()
    for l in quad_loads(A,0,0)+quad_loads(A,1,1): a(l)
    off()
    a("s_waitcnt lgkmcnt(0)")
    a("s_waitcnt vmcnt(6)")
    for e in range(2):
        m0=108+2*e
        a(f"v_lshlrev_b32 v112, 16, v{m0}")
        a(f"v_and_b32 v113, 0xffff0000, v{m0}")
        a(f"v_lshlrev_b32 v114, 16, v{m0+1}")
        a(f"v_and_b32 v115, 0xffff0000, v{m0+1}")
        for d in range(4):
            for k in range(4):
                src=56+k*2+d//2
                if d%2==0: a(f"s_lshl_b32 s92, s{src}, 16")
                else: a(f"s_and_b32 s92, s{src}, 0xffff0000")
                if k==0: a(f"v_mul_f32 v{116+d}, s92, v112")
                else: a(f"v_fmac_f32 v{116+d}, s92, v{112+k}")
        a(f"v_cvt_pk_bf16_f32 v{120+2*e}, v116, v117")
        a(f"v_cvt_pk_bf16_f32 v{121+2*e}, v118, v119")
    a("buffer_store_dwordx2 v[120:121], v2, s[52:55], 0 offen")
    a(f"v_cmp_gt_u32 vcc, {SO-1024}, v0")
    a("s_and_saveexec_b64 s[96:97], vcc")
    a("buffer_store_dwordx2 v[122:123], v3, s[52:55], 0 offen")
    a("s_mov_b64 exec, s[96:97]")
    a("s_mov_b32 s92, 0x7fff0000")
    for d in range(4):
        for e in range(2):
            src=120+2*e+d//2
            dst=112+d if e==0 else 116
            if d%2==0:
                a(f"v_lshlrev_b32 v{dst}, 16, v{src}")
                a(f"v_and_b32 v{dst}, s92, v{dst}")
            else:
                a(f"v_and_b32 v{dst}, s92, v{src}")
        a(f"v_max_u32 v{112+d}, v{112+d}, v116")
    for ctl in ("row_shr:1 row_mask:0xf bank_mask:0xf bound_ctrl:0","row_shr:2 row_mask:0xf bank_mask:0xf bound_ctrl:0","row_shr:4 row_mask:0xf bank_mask:0xf bound_ctrl:0","row_shr:8 row_mask:0xf bank_mask:0xf bound_ctrl:0","row_bcast:15 row_mask:0xa bank_mask:0xf","row_bcast:31 row_mask:0xc bank_mask:0xf"):
        a("s_nop 0")
        for d in range(4): a(f"v_max_u32_dpp v{112+d}, v{112+d}, v{112+d} {ctl}")
    a("v_and_b32 v116, 63, v0")
    a("v_cmp_eq_u32 vcc, 63, v116")
    a("s_and_saveexec_b64 s[96:97], vcc")
    a("v_mov_b32 v116, 0")
    for d in range(4): a(f"ds_max_u32 v116, v{112+d} offset:{K1_MMAX+4*d}")
    a("s_mov_b64 exec, s[96:97]")
    stamp(a)
    def process(S,step0,HIST,waits,SC,inter,export_mmax=False):
        OUT,IN,TH=S
        on()
        for j in range(5):
            a(f"s_waitcnt vmcnt({waits[j]})")
            if j+2<=4:
                for l in quad_loads(S,j+2,step0+j+2): a(l)
            for k in range(4*j,4*j+4):
                a(f"v_mul_hi_u32_u24 v2, s80, v{OUT+k}")
                a(f"v_mad_i32_i24 v3, v2, s81, v{OUT+k}")
                a(f"v_lshl_or_b32 v{IN+k}, v{IN+k}, 11, v3")
                a(f"v_lshlrev_b32 v{OUT+k}, 2, v2")
                if k%4==0 and k>=12: a("s_waitcnt lgkmcnt(11)")
                a(f"ds_add_rtn_u32 v{R+k}, v{OUT+k}, v1 offset:{HIST}")
        off()
        a(f"s_waitcnt vmcnt(0) lgkmcnt(0)")
        a("s_barrier")
        stamp(a)
        if export_mmax:
            Lm=a.newlabel("mmax_skip")
            a("s_cmp_lg_u32 s90, 1")
            a(f"s_cbranch_scc1 {Lm}")
            a("s_mov_b64 exec, 15")
            a(f"v_and_b32 v2, 3, v0")
            a(f"v_lshlrev_b32 v2, 2, v2")
            a(f"ds_read_b32 v3, v2 offset:{K1_MMAX}")
            a(f"s_lshl_b32 s92, s2, 4")
            a(f"s_add_u32 s92, s92, {MMAX_OFF}")
            srd(a,76,14,15,"s92",16)
            a("s_waitcnt lgkmcnt(0)")
            a("buffer_store_dword v3, v2, s[76:79], 0 offen")
            a("s_mov_b64 exec, -1")
            a.label(Lm)
        Ls=a.newlabel("scan_skip")
        c0,c1,c2,c3,ad,tt=SC,SC+1,SC+2,SC+3,SC+4,SC+5
        a("s_cmp_lg_u32 s90, 0")
        a(f"s_cbranch_scc1 {Ls}")
        a(f"v_lshlrev_b32 v{ad}, 4, v0")
        a(f"ds_read_b128 v[{c0}:{c3}], v{ad} offset:{HIST}")
        a("s_waitcnt lgkmcnt(0)")
        a(f"v_add_u32 v{tt}, v{c0}, v{c1}")
        a(f"v_add_u32 v{tt}, v{tt}, v{c2}")
        a(f"v_add_u32 v{tt}, v{tt}, v{c3}")
        wave_scan_add(a,tt)
        a(f"v_lshlrev_b32 v{ad}, 13, v0")
        a("s_lshl_b32 s92, s91, 2")
        a(f"v_add_u32 v{ad}, 4096, v{ad}")
        for i,(c,offs) in enumerate(((c3,2048),(c2,0),(c1,2048),(c0,0))):
            if i==2: a(f"v_subrev_u32 v{ad}, 4096, v{ad}")
            a(f"v_sub_u32 v{tt}, v{tt}, v{c}")
            a(f"v_lshl_or_b32 v{c}, v{c}, 16, v{tt}")
            a(f"buffer_store_dword v{c}, v{ad}, s[72:75], s92 offen offset:{offs}")
            a("s_nop 0")
            a(f"v_mov_b32 v{c}, v{tt}")
        a(f"v_lshlrev_b32 v{ad}, 4, v0")
        a(f"ds_write_b128 v{ad}, v[{c0}:{c3}] offset:{HIST}")
        a("s_waitcnt lgkmcnt(0)")
        a.label(Ls)
        a("s_barrier")
        stamp(a)
        on()
        def reads(j):
            for k in range(4*j,4*j+4): a(f"ds_read_b32 v{OUT+k}, v{OUT+k} offset:{HIST}")
        reads(0); reads(1)
        inter=list(inter)
        for j in range(5):
            a("s_waitcnt lgkmcnt(4)" if j<4 else "s_waitcnt lgkmcnt(0)")
            for k in range(4*j,4*j+4):
                a(f"v_add_u32 v{OUT+k}, v{OUT+k}, v{R+k}")
                a(f"v_lshlrev_b32 v2, 1, v{OUT+k}")
                a("v_and_b32 v2, -16, v2")
                a(f"v_lshl_add_u32 v3, v{OUT+k}, 2, v2")
                a(f"v_add_lshl_u32 v2, v{OUT+k}, v2, 1")
                a(f"ds_write_b32 v3, v{IN+k} offset:{K1_STAGE}")
                th=TH+2*(k//4)+(k%4)//2
                if k%2==0: a(f"ds_write_b16 v2, v{th} offset:{K1_STAGE+32}")
                else: a(f"ds_write_b16_d16_hi v2, v{th} offset:{K1_STAGE+32}")
                if inter and k%3==1: a(inter.pop(0))
            if j+2<=4:
                a("s_waitcnt lgkmcnt(8)")
                reads(j+2)
        assert not inter
        off()
        a("s_waitcnt lgkmcnt(0)")
        a("s_barrier")
        stamp(a)
        a(f"s_mul_i32 s92, s91, {CH*6}")
        a(f"s_add_u32 s92, s92, {REC_OFF}")
        srd(a,76,14,15,"s92",CH*6)
        dst=[R+4*i for i in range(5)]+[OUT+4*i for i in range(3)]
        for i in range(8):
            if i<4: a(f"ds_read_b128 {vr(dst[i],4)}, v4 offset:{K1_STAGE+i*16384}")
            else:   a(f"ds_read_b128 {vr(dst[i],4)}, v6 offset:{K1_STAGE+(i-4)*16384}")
        a("v_add_u32 v2, 114688, v4")
        so=["0","s82","s83","s84","s85","s86","s87"]
        for i in range(8):
            a(f"s_waitcnt lgkmcnt({7-i})")
            if i<7: a(f"buffer_store_dwordx4 {vr(dst[i],4)}, v4, s[76:79], {so[i]} offen {STPOL}")
            else:   a(f"buffer_store_dwordx4 {vr(dst[i],4)}, v2, s[76:79], 0 offen {STPOL}")
    process(A,0,K1_HISTA,[4,4,4,4,1],B[0],quad_loads(B,0,5)+quad_loads(B,1,6),True)
    a("s_add_u32 s91, s91, 1")
    process(B,5,K1_HISTB,[12,12,4,4,1],A[1],[])
    if STAMP:
        a("s_waitcnt vmcnt(0)")
        stamp(a)
        stamp_flush(a,14,15,0,"s90",base=56,srdreg=40)
    a.label("L_k1_end")
    a("s_endpgm")

GCAP=6144
K2_ACC01=0
K2_ACC23=10000
K2_WTOT=20000
K2_MMAX=20064
K2_AHI=20096
K2_ALO=30096
K2_DESC=50096
K2_LDS=K2_DESC+(GCAP+384)*4
KLIM=float(2**31)/(GCAP*8*1.03)
import struct
def fbits(x): return "0x%08x"%struct.unpack("<I",struct.pack("<f",x))[0]
def gen_k2(a):
    a(f".globl {K2}\n.p2align 8\n.type {K2},@function\n{K2}:")
    a("s_cmp_ge_u32 s2, 256")
    a("s_cbranch_scc1 L_k2_end")
    if STAMP: a("s_memrealtime s[98:99]")
    a("s_load_dwordx2 s[4:5], s[0:1], 0")
    a("s_load_dwordx2 s[6:7], s[0:1], 24")
    a("s_load_dwordx2 s[8:9], s[0:1], 40")
    a("s_load_dwordx4 s[12:15], s[0:1], 56")
    a("s_load_dwordx4 s[16:19], s[0:1], 80")
    a("s_load_dwordx2 s[10:11], s[0:1], 104")
    a("v_lshrrev_b32 v2, 6, v0")
    a("v_mov_b32 v20, 0"); a("v_mov_b32 v21, 0"); a("v_mov_b32 v22, 0"); a("v_mov_b32 v23, 0")
    a("v_readfirstlane_b32 s3, v2")
    a("v_lshlrev_b32 v5, 4, v0")
    a(f"ds_write_b128 v5, v[20:23] offset:0")
    a(f"v_cmp_gt_u32 vcc, {(K2_AHI//16)-1024}, v0")
    a("s_and_saveexec_b64 s[96:97], vcc")
    a(f"ds_write_b128 v5, v[20:23] offset:16384")
    a("s_mov_b64 exec, s[96:97]")
    a("s_waitcnt lgkmcnt(0)")
    a(f"s_mul_i32 s96, s2, {NCH*4}")
    a(f"s_add_u32 s96, s96, {TAB_OFF}")
    srd(a,20,10,11,"s96",NCH*4)
    srd(a,24,10,11,REC_OFF,T*6)
    srd(a,28,10,11,0,E*8)
    srd(a,32,6,7,0,E*2)
    srd(a,88,10,11,MMAX_OFF,256*16)
    a("v_lshrrev_b32 v2, 1, v0")
    a("v_lshlrev_b32 v2, 2, v2")
    a("buffer_load_dword v10, v2, s[20:23], 0 offen")
    a("v_lshlrev_b32 v2, 4, v0")
    a("buffer_load_dwordx4 v[24:27], v2, s[88:91], 0 offen")
    a(f"s_mul_i32 s97, s2, {SO}")
    a("v_add_u32 v3, s97, v0")
    a("v_lshlrev_b32 v3, 1, v3")
    a("v_add_u32 v4, 2048, v3")
    a("v_mov_b32 v11, 0"); a("v_mov_b32 v12, 0")
    a("buffer_load_short_d16_hi v11, v3, s[32:35], 0 offen")
    a("buffer_load_short_d16_hi v12, v4, s[32:35], 0 offen")
    a("s_load_dwordx4 s[36:39], s[8:9], 0")
    a("s_load_dwordx16 s[40:55], s[14:15], 0")
    a("s_load_dwordx16 s[56:71], s[14:15], 64")
    a("s_load_dwordx16 s[72:87], s[14:15], 128")
    a("s_barrier")
    a("s_waitcnt vmcnt(2)")
    for ctl in ("row_shr:1 row_mask:0xf bank_mask:0xf bound_ctrl:0","row_shr:2 row_mask:0xf bank_mask:0xf bound_ctrl:0","row_shr:4 row_mask:0xf bank_mask:0xf bound_ctrl:0","row_shr:8 row_mask:0xf bank_mask:0xf bound_ctrl:0","row_bcast:15 row_mask:0xa bank_mask:0xf","row_bcast:31 row_mask:0xc bank_mask:0xf"):
        a("s_nop 0")
        for d in range(4): a(f"v_max_u32_dpp v{24+d}, v{24+d}, v{24+d} {ctl}")
    a("v_and_b32 v5, 63, v0")
    a("v_cmp_eq_u32 vcc, 63, v5")
    a("s_and_saveexec_b64 s[96:97], vcc")
    a("v_mov_b32 v5, 0")
    for d in range(4): a(f"ds_max_u32 v5, v{24+d} offset:{K2_MMAX+4*d}")
    a("s_mov_b64 exec, s[96:97]")
    a("v_lshrrev_b32 v14, 16, v10")
    a("v_and_b32 v15, 0xffff, v10")
    a("v_lshrrev_b32 v18, 1, v0")
    a(f"v_mul_u32_u24 v18, {CH}, v18")
    a("v_add_u32 v18, v18, v15")
    a("v_add_u32 v19, v18, v14")
    a("v_add_u32 v16, 7, v19")
    a("v_lshrrev_b32 v16, 3, v16")
    a("v_lshrrev_b32 v15, 3, v18")
    a("v_sub_u32 v16, v16, v15")
    a("v_cmp_eq_u32 vcc, 0, v14")
    a("s_nop 1")
    a("v_cndmask_b32 v16, v16, 0, vcc") if False else a("v_cndmask_b32_e64 v16, v16, 0, vcc")
    a("v_and_b32 v13, 1, v0")
    a("v_cmp_eq_u32 vcc, 0, v13")
    a("s_nop 1")
    a("v_cndmask_b32_e64 v17, 0, v16, vcc")
    wave_scan_add(a,17)
    a("v_and_b32 v5, 63, v0")
    a("v_cmp_eq_u32 vcc, 63, v5")
    a("s_and_saveexec_b64 s[96:97], vcc")
    a("s_lshl_b32 s91, s3, 2") if False else None
    a("s_lshl_b32 s92, s3, 2")
    a(f"v_mov_b32 v5, s92")
    a(f"ds_write_b32 v5, v17 offset:{K2_WTOT}")
    a("s_mov_b64 exec, s[96:97]")
    a("s_waitcnt vmcnt(0) lgkmcnt(0)")
    a("s_barrier")
    stamp(a,base=92-92+0) if False else None
    a("s_mov_b32 s92, 0xc1200000")
    a("s_mov_b32 s93, 0x3fb8aa3b")
    a("s_mov_b32 s94, 0xffff0000")
    def rnd2(x,y,t=9):
        a(f"v_cvt_pk_bf16_f32 v{t}, v{x}, v{y}")
        a(f"v_lshlrev_b32 v{x}, 16, v{t}")
        a(f"v_and_b32 v{y}, s94, v{t}")
    for r in range(8):
        src=36+r//2
        if r%2==0: a(f"s_lshl_b32 s95, s{src}, 16")
        else: a(f"s_and_b32 s95, s{src}, s94")
        x=24+r; y=32+r
        a(f"v_subrev_f32 v{x}, s95, v11")
        a(f"v_subrev_f32 v{y}, s95, v12")
        rnd2(x,y)
        a(f"v_mul_f32 v{x}, v{x}, v{x}")
        a(f"v_mul_f32 v{y}, v{y}, v{y}")
        rnd2(x,y)
        a(f"v_mul_f32 v{x}, s92, v{x}")
        a(f"v_mul_f32 v{y}, s92, v{y}")
        rnd2(x,y)
        a(f"v_mul_f32 v{x}, s93, v{x}")
        a(f"v_mul_f32 v{y}, s93, v{y}")
        a(f"v_exp_f32 v{x}, v{x}")
        a(f"v_exp_f32 v{y}, v{y}")
        a("s_nop 0")
        rnd2(x,y)
    for r in range(8):
        for l in range(3):
            for d in range(4):
                src=40+(r*3+l)*2+d//2
                if d%2==0: a(f"s_lshl_b32 s95, s{src}, 16")
                else: a(f"s_and_b32 s95, s{src}, s94")
                if r==0:
                    a(f"v_mul_f32 v{64+l*4+d}, s95, v24")
                    a(f"v_mul_f32 v{76+l*4+d}, s95, v32")
                else:
                    a(f"v_fmac_f32 v{64+l*4+d}, s95, v{24+r}")
                    a(f"v_fmac_f32 v{76+l*4+d}, s95, v{32+r}")
    a("s_load_dwordx16 s[40:55], s[12:13], 0")
    a("s_load_dwordx8 s[56:63], s[16:17], 0")
    a("v_mov_b32 v5, 0")
    a(f"ds_read_b128 v[88:91], v5 offset:{K2_MMAX}")
    for i in range(12): rnd2(64+i,76+i)
    a("s_waitcnt lgkmcnt(0)")
    a(f"s_mov_b32 s95, {fbits(KLIM)}")
    a("s_mov_b32 s92, 0x7f800000")
    a("s_mov_b32 s93, 0x71800000")
    for e in range(2):
        Ab=64+12*e
        for d in range(4):
            a(f"v_add_f32 v5, abs(v{Ab+d}), abs(v{Ab+4+d})") if False else a(f"v_add_f32_e64 v5, |v{Ab+d}|, |v{Ab+4+d}|")
            a(f"v_add_f32_e64 v5, v5, |v{Ab+8+d}|")
            a(f"v_mul_f32 v5, v5, v{88+d}")
            a("v_rcp_f32 v5, v5")
            a("s_nop 0")
            a("v_mul_f32 v5, s95, v5")
            a("v_and_b32 v5, s92, v5")
            a("v_min_f32 v5, s93, v5")
            a("v_max_f32 v5, 0x01000000, v5")
            for l in range(3): a(f"v_mul_f32 v{Ab+4*l+d}, v5, v{Ab+4*l+d}")
            a(f"v_sub_u32 v{48+4*e+d}, 0x7f000000, v5")
    for e in range(2):
        Ab=64+12*e
        for d in range(4): a(f"v_cvt_pk_bf16_f32 v{92+d}, v{Ab+d}, v{Ab+4+d}")
        a(f"v_cvt_pk_bf16_f32 v96, v{Ab+8}, v{Ab+9}")
        a(f"v_cvt_pk_bf16_f32 v97, v{Ab+10}, v{Ab+11}")
        if e==0:
            a("v_lshlrev_b32 v5, 4, v0"); a("v_lshlrev_b32 v6, 3, v0")
            a(f"ds_write_b128 v5, v[92:95] offset:{K2_ALO}")
            a(f"ds_write_b64 v6, v[96:97] offset:{K2_AHI}")
        else:
            a(f"v_cmp_gt_u32 vcc, {SO-1024}, v0")
            a("s_and_saveexec_b64 s[96:97], vcc")
            a(f"ds_write_b128 v5, v[92:95] offset:{K2_ALO+16384}")
            a(f"ds_write_b64 v6, v[96:97] offset:{K2_AHI+8192}")
            a("s_mov_b64 exec, s[96:97]")
        a("s_nop 1")
    a("s_waitcnt lgkmcnt(0)")
    for r in range(8):
        for d in range(4):
            src=40+r*2+d//2
            if d%2==0: a(f"s_lshl_b32 s95, s{src}, 16")
            else: a(f"s_and_b32 s95, s{src}, s94")
            if r==0:
                a(f"v_mul_f32 v{40+d}, s95, v24"); a(f"v_mul_f32 v{44+d}, s95, v32")
            else:
                a(f"v_fmac_f32 v{40+d}, s95, v{24+r}"); a(f"v_fmac_f32 v{44+d}, s95, v{32+r}")
    for d in range(4): rnd2(40+d,44+d)
    for i in range(8): a(f"v_mov_b32 v{56+i}, 0")
    a("v_mov_b32 v5, 0")
    for q in range(4): a(f"ds_read_b128 v[{24+4*q}:{27+4*q}], v5 offset:{K2_WTOT+16*q}")
    a("s_waitcnt lgkmcnt(0)")
    a("v_sub_u32 v17, v17, v16")
    a("s_mov_b32 s92, 0")
    for i in range(16):
        a(f"v_readfirstlane_b32 s95, v{24+i}")
        a("s_nop 0")
        a(f"s_cmp_gt_u32 s3, {i}")
        a("s_cselect_b32 s93, s95, 0")
        a("v_add_u32 v17, s93, v17")
        a("s_add_u32 s92, s92, s95")
    a("s_mov_b32 s93, 0")
    stamp(a,base=64)
    a.label("L_k2_batch")
    a("s_cmp_ge_u32 s93, s92")
    a("s_cbranch_scc1 L_k2_done")
    a("v_mov_b32 v20, 0"); a("v_mov_b32 v21, 0"); a("v_mov_b32 v22, 0"); a("v_mov_b32 v23, 0")
    a("v_lshlrev_b32 v5, 4, v0")
    a(f"v_add_u32 v5, {K2_DESC}, v5")
    a(f"ds_write_b128 v5, v[20:23]")
    nrest=((GCAP+384)*4-16384)//16
    a(f"v_cmp_gt_u32 vcc, {nrest}, v0")
    a("s_and_saveexec_b64 s[96:97], vcc")
    a(f"ds_write_b128 v5, v[20:23] offset:16384")
    a("s_mov_b64 exec, s[96:97]")
    a("s_waitcnt lgkmcnt(0)")
    a("s_barrier")
    a("v_sub_u32 v8, s93, v17")
    a("v_max_i32 v8, 0, v8")
    a("v_xor_b32 v5, v8, v13")
    a("v_and_b32 v5, 1, v5")
    a("v_add_u32 v8, v8, v5")
    a(f"s_add_u32 s95, s93, {GCAP}")
    a("s_mov_b64 s[96:97], exec")
    a.label("L_k2_build")
    a("v_add_u32 v5, v17, v8")
    a("v_cmp_lt_u32 vcc, v8, v16")
    a("v_cmp_gt_u32 s[90:91], s95, v5")
    a("s_and_b64 vcc, vcc, s[90:91]")
    a("s_and_b64 exec, exec, vcc")
    a("s_cbranch_execz L_k2_build_done")
    a("v_add_u32 v6, v15, v8")
    a("v_lshlrev_b32 v7, 3, v6")
    a("v_max_u32 v9, v7, v18")
    a("v_add_u32 v12, 8, v7")
    a("v_min_u32 v12, v12, v19")
    a("v_sub_u32 v12, v12, v9")
    a("v_sub_u32 v9, v9, v7")
    a("v_lshl_or_b32 v12, v9, 4, v12")
    a("v_lshl_or_b32 v6, v6, 7, v12")
    a("v_subrev_u32 v5, s93, v5")
    a("v_lshlrev_b32 v5, 2, v5")
    a(f"v_add_u32 v5, {K2_DESC}, v5")
    a(f"ds_write_b32 v5, v6")
    a("v_add_u32 v8, 2, v8")
    a("s_branch L_k2_build")
    a.label("L_k2_build_done")
    a("s_mov_b64 exec, s[96:97]")
    a("s_waitcnt lgkmcnt(0)")
    a("s_barrier")
    stamp(a,base=64)
    a("s_sub_u32 s95, s92, s93")
    a(f"s_min_u32 s95, s95, {GCAP}")
    a("s_add_u32 s95, s95, 127")
    a("s_lshr_b32 s95, s95, 7")
    a("v_and_b32 v5, 63, v0")
    a("v_lshrrev_b32 v6, 3, v5")
    a("s_lshl_b32 s91, s3, 3")
    a("v_add_u32 v6, s91, v6")
    a("v_lshlrev_b32 v70, 2, v6")
    a(f"v_add_u32 v70, {K2_DESC}, v70")
    a("v_and_b32 v71, 7, v5")
    a("v_lshlrev_b32 v68, 2, v71")
    a("v_lshlrev_b32 v69, 1, v71")
    a("v_sub_u32 v69, 32, v69")
    for s in range(3): a(f"v_mov_b32 v{75+s}, 0")
    a("s_mov_b32 s91, 48")
    MS=[80,82,84]
    def S1(s):
        a(f"ds_read_b32 v84, v70")
        a("v_add_u32 v70, 512, v70")
        a("s_waitcnt lgkmcnt(0)")
        a("v_lshrrev_b32 v85, 7, v84")
        a("v_bfe_u32 v86, v84, 4, 3")
        a("v_and_b32 v84, 15, v84")
        a("v_sub_u32 v86, v71, v86")
        a("v_mad_u32_u24 v85, v85, s91, v68")
        a(f"v_cmp_lt_u32 {sr(MS[s],2)}, v86, v84")
        a("v_add_u32 v86, v85, v69")
        a(f"buffer_load_dword v{72+s}, v85, s[24:27], 0 offen")
        a(f"buffer_load_short_d16_hi v{75+s}, v86, s[24:27], 0 offen")
    def S2(s,wait):
        a(f"s_waitcnt vmcnt({wait})")
        a(f"v_lshrrev_b32 v87, 8, v{72+s}")
        a(f"v_and_b32 v87, -8, v87")
        a(f"v_cndmask_b32_e64 v87, 0, v87, {sr(MS[s],2)}")
        if os.environ.get('NOGATHER'): a("v_and_b32 v87, 0x3f8, v87")
        a(f"buffer_load_dwordx2 {vr(78+2*s,2)}, v87, s[28:31], 0 offen")
    def S3(s,wait):
        a(f"v_lshlrev_b32 v88, 3, v{72+s}")
        a(f"v_and_b32 v88, 0x3ff8, v88")
        a(f"v_add_u32 v89, v88, v88")
        a(f"ds_read_b128 v[92:95], v89 offset:{K2_ALO}")
        a(f"ds_read_b64 v[96:97], v88 offset:{K2_AHI}")
        a(f"v_mul_f32 v90, 0.15915494, v{75+s}")
        a("v_fract_f32 v90, v90")
        a("v_cos_f32 v90, v90")
        a("s_nop 0")
        a("v_add_f32 v91, v90, v90")
        a("v_fma_f32 v91, v91, v90, -1.0")
        a("v_add_f32 v98, v91, v91")
        a("v_fma_f32 v98, v98, v90, -v90")
        a("v_cvt_pk_bf16_f32 v90, v90, v91")
        a("v_cvt_pk_bf16_f32 v91, v98, 0")
        a("v_cvt_pk_bf16_f32 v98, 0, v98")
        a("s_waitcnt lgkmcnt(0)")
        a("v_dot2_f32_bf16 v100, v96, v91, 0")
        a("v_dot2_f32_bf16 v101, v96, v98, 0")
        a("v_dot2_f32_bf16 v102, v97, v91, 0")
        a("v_dot2_f32_bf16 v103, v97, v98, 0")
        for d in range(4): a(f"v_dot2_f32_bf16 v{100+d}, v{92+d}, v90, v{100+d}")
        a(f"s_waitcnt vmcnt({wait})")
        m0=78+2*s
        a(f"v_lshlrev_b32 v104, 16, v{m0}")
        a(f"v_and_b32 v105, s94, v{m0}")
        a(f"v_lshlrev_b32 v106, 16, v{m0+1}")
        a(f"v_and_b32 v107, s94, v{m0+1}")
        for d in range(4): a(f"v_mul_f32 v{104+d}, v{104+d}, v{100+d}")
        for d in range(4): a(f"v_cvt_rpi_i32_f32 v{104+d}, v{104+d}")
        a("v_ashrrev_i32 v100, 31, v104")
        a("v_ashrrev_i32 v101, 31, v106")
        a("v_add_u32 v105, v105, v100")
        a("v_add_u32 v107, v107, v101")
        if not os.environ.get('NOATOM'):
            a(f"s_mov_b64 exec, {sr(MS[s],2)}")
            a(f"ds_add_u64 v88, v[104:105] offset:{K2_ACC01}")
            a(f"ds_add_u64 v88, v[106:107] offset:{K2_ACC23}")
            a("s_mov_b64 exec, -1")
    S1(0); S1(1); S2(0,2)
    a("s_mov_b32 s90, 0")
    a.label("L_k2_loop")
    for u in range(3):
        S1((u+2)%3)
        S2((u+1)%3, 3)
        S3(u, 3)
        a("s_add_u32 s90, s90, 1")
        a("s_cmp_ge_u32 s90, s95")
        if u<2: a("s_cbranch_scc1 L_k2_loop_done")
        else:   a("s_cbranch_scc0 L_k2_loop")
    a.label("L_k2_loop_done")
    a("s_waitcnt vmcnt(0) lgkmcnt(0)")
    a("s_barrier")
    stamp(a,base=64)
    a("v_lshlrev_b32 v5, 3, v0")
    a("v_mov_b32 v20, 0"); a("v_mov_b32 v21, 0")
    for e in range(2):
        if e==1:
            a(f"v_cmp_gt_u32 vcc, {SO-1024}, v0")
            a("s_and_saveexec_b64 s[96:97], vcc")
        a(f"ds_read_b64 v[24:25], v5 offset:{K2_ACC01+e*8192}")
        a(f"ds_read_b64 v[26:27], v5 offset:{K2_ACC23+e*8192}")
        a("s_waitcnt lgkmcnt(0)")
        a(f"ds_write_b64 v5, v[20:21] offset:{K2_ACC01+e*8192}")
        a(f"ds_write_b64 v5, v[20:21] offset:{K2_ACC23+e*8192}")
        for p in range(2):
            a(f"v_lshrrev_b32 v28, 31, v{24+2*p}")
            a(f"v_add_u32 v{25+2*p}, v{25+2*p}, v28")
        for d in range(4):
            a(f"v_cvt_f32_i32 v{24+d}, v{24+d}")
            a(f"v_add_f32 v{56+4*e+d}, v{56+4*e+d}, v{24+d}")
        if e==1: a("s_mov_b64 exec, s[96:97]")
    a("s_waitcnt lgkmcnt(0)")
    a(f"s_add_u32 s93, s93, {GCAP}")
    a("s_barrier")
    a("s_branch L_k2_batch")
    a.label("L_k2_done")
    srd(a,20,4,5,0,E*8)
    srd(a,24,18,19,0,E*8)
    a(f"s_mul_i32 s97, s2, {SO}")
    a("v_add_u32 v3, s97, v0")
    a("v_lshlrev_b32 v3, 3, v3")
    a("v_add_u32 v4, 8192, v3")
    a("buffer_load_dwordx2 v[24:25], v3, s[20:23], 0 offen")
    a("buffer_load_dwordx2 v[26:27], v4, s[20:23], 0 offen")
    for k in range(4):
        for d in range(4):
            src=56+k*2+d//2
            if d%2==0: a(f"s_lshl_b32 s{64+k*4+d}, s{src}, 16") if not STAMP else a(f"s_lshl_b32 s{36+k*4+d}, s{src}, 16")
            else: a(f"s_and_b32 s{64+k*4+d}, s{src}, s94") if not STAMP else a(f"s_and_b32 s{36+k*4+d}, s{src}, s94")
    WU=64 if not STAMP else 36
    for e in range(2):
        for d in range(4): a(f"v_mul_f32 v{60+40+d}, v{56+4*e+d}, v{48+4*e+d}")
        def r2(x,y):
            a(f"v_cvt_pk_bf16_f32 v9, v{x}, v{y}"); a(f"v_lshlrev_b32 v{x}, 16, v9"); a(f"v_and_b32 v{y}, s94, v9")
        r2(100,101); r2(102,103)
        for d in range(4):
            a(f"v_mul_f32 v{64+d}, s{WU+d}, v100")
            for k in range(1,4): a(f"v_fmac_f32 v{64+d}, s{WU+4*k+d}, v{100+k}")
        r2(64,65); r2(66,67)
        for d in range(4): a(f"v_mul_f32 v{64+d}, v{64+d}, v{40+4*e+d}")
        r2(64,65); r2(66,67)
        if e==0: a("s_waitcnt vmcnt(0)")
        mm=24+2*e
        a(f"v_lshlrev_b32 v100, 16, v{mm}"); a(f"v_and_b32 v101, s94, v{mm}")
        a(f"v_lshlrev_b32 v102, 16, v{mm+1}"); a(f"v_and_b32 v103, s94, v{mm+1}")
        for d in range(4): a(f"v_add_f32 v{64+d}, v{64+d}, v{100+d}")
        a(f"v_cvt_pk_bf16_f32 v{28+2*e}, v64, v65")
        a(f"v_cvt_pk_bf16_f32 v{29+2*e}, v66, v67")
    a("buffer_store_dwordx2 v[28:29], v3, s[24:27], 0 offen")
    a(f"v_cmp_gt_u32 vcc, {SO-1024}, v0")
    a("s_and_saveexec_b64 s[96:97], vcc")
    a("buffer_store_dwordx2 v[30:31], v4, s[24:27], 0 offen")
    if STAMP:
        a("s_mov_b64 exec, -1")
        a("s_waitcnt vmcnt(0)")
        stamp(a,base=64)
        stamp_flush(a,10,11,1,"s3",base=64,srdreg=40)
    a.label("L_k2_end")
    a("s_endpgm")

def main(out):
    a=Asm()
    a(HEADER.rstrip())
    a(f"; @launch kernel={K1} grid=(256,1,1) block=(1024,1,1) lds={K1_LDS}")
    a(f"; @launch kernel={K2} grid=(256,1,1) block=(1024,1,1) lds={K2_LDS}")
    NEMPTY=int(os.environ.get('NEMPTY','0'))
    for i in range(NEMPTY): a(f"; @launch kernel=gs_nop_kernel grid=(1,1,1) block=(64,1,1) lds=0")
    a('.amdgcn_target "amdgcn-amd-amdhsa--gfx950"')
    a(".text")
    gen_k1(a)
    gen_k2(a)
    if NEMPTY:
        a(".globl gs_nop_kernel\n.p2align 8\n.type gs_nop_kernel,@function\ngs_nop_kernel:\ns_endpgm")
    a('.section .rodata,"a"')
    a(".p2align 6")
    a(kernel_desc(K1,128,100))
    a(".p2align 6")
    a(kernel_desc(K2,112,100))
    if NEMPTY:
        a(".p2align 6")
        a(kernel_desc("gs_nop_kernel",8,16))
    lines=[l for l in a.lines if l is not None]
    open(out,"w").write("\n".join(lines)+"\n")
if __name__=="__main__":
    main(sys.argv[1] if len(sys.argv)>1 else "gather_scatter__molecular_angular_gemnet__graph.s")
```
